```python
import torch

def _softmax(x, axis=-1):
    return torch.softmax(x, dim=axis)
def _gelu(x):
    return torch.nn.functional.gelu(x, approximate="tanh")
def _silu(x):
    return torch.nn.functional.silu(x)
def _sigmoid(x):
    return torch.sigmoid(x)
def _layernorm(x, axis=-1, eps=1e-5):
    m = x.mean(dim=axis, keepdim=True)
    v = x.var(dim=axis, keepdim=True, unbiased=False)
    return (x - m) / torch.sqrt(v + eps)
def _scatter_add(tgt, idx, src, axis=0):
    return tgt.clone().index_add_(axis, idx, src)
def _segment_sum(src, seg, n):
    out = torch.zeros((n,) + src.shape[1:], dtype=src.dtype)
    return out.index_add_(0, seg, src)
def _pad(x, pw):
    flat = tuple(v for pair in reversed(pw) for v in pair)
    return torch.nn.functional.pad(x, flat)

kernel_name = 'concat_heads__softmax_full_mha__mha_block__prompt'

def setup_inputs():

    _w = (lambda a: (lambda t: t.to(torch.bfloat16) if t.is_floating_point() else t)(torch.as_tensor(a)))
    def _A_setup():
        B, S, D = 1, 2048, 1024
        return {
            "x": _w((lambda *s: torch.randn(*s, dtype=torch.bfloat16) * 0.2)(B, S, D)),
            "wqkv": _w((lambda *s: torch.randn(*s, dtype=torch.bfloat16) * 0.2)(D, 3 * D)),
            "wo": _w((lambda *s: torch.randn(*s, dtype=torch.bfloat16) * 0.05)(D, D)),
        }
    _A_in = _A_setup()

    def _B_setup():
        B, S, D, H = 1, 2048, 1024, 32
        return {
            "x": _w((lambda *s: torch.randn(*s, dtype=torch.bfloat16) * 0.2)(B, S, D)),
            "wqkv": _w((lambda *s: torch.randn(*s, dtype=torch.bfloat16) * 0.2)(D, 3 * D)),
            "wo": _w((lambda *s: torch.randn(*s, dtype=torch.bfloat16) * 0.05)(D, D)),
        }
    _B_in = _B_setup()

    return {
        "A_x": _A_in["x"],
        "A_wqkv": _A_in["wqkv"],
        "A_wo": _A_in["wo"],
        "B_x": _B_in["x"],
        "B_wqkv": _B_in["wqkv"],
        "B_wo": _B_in["wo"],
    }

def reference(A_x, A_wqkv, A_wo, B_x, B_wqkv, B_wo):
    def _A_ref(x, wqkv, wo):
        B, S, D = x.shape
        H = 32; Dh = D // H
        qkv = (lambda x, *d: x.permute(*d))((x @ wqkv).reshape(B, S, 3, H, Dh), 2, 0, 3, 1, 4)
        q, k, v = qkv[0], qkv[1], qkv[2]
        scale = Dh ** -0.5
        scores = torch.einsum("bhqd,bhkd->bhqk", q, k) * scale
        p = _softmax(scores, axis=-1)
        o = torch.einsum("bhqk,bhkd->bhqd", p, v)
        return (lambda x, *d: x.permute(*d))(o, 0, 2, 1, 3).reshape(B, S, D) @ wo

    def _B_ref(x, wqkv, wo):
        B, S, D = x.shape
        H = 32
        Dh = D // H
        qkv = (lambda x, *d: x.permute(*d))((x @ wqkv).reshape(B, S, 3, H, Dh), 2, 0, 3, 1, 4)
        q, k, v = qkv[0], qkv[1], qkv[2]
        scores = torch.einsum("bhqd,bhkd->bhqk", q, k) * (Dh ** -0.5)
        p = _softmax(scores, axis=-1)
        o = torch.einsum("bhqk,bhkd->bhqd", p, v)
        return (lambda x, *d: x.permute(*d))(o, 0, 2, 1, 3).reshape(B, S, D) @ wo

    a = _A_ref(A_x, A_wqkv, A_wo)
    b = _B_ref(B_x, B_wqkv, B_wo)
    return torch.concatenate([a, b], axis=-1)
```

```python
class Asm:
    def __init__(self):
        self.lines = []
    def __call__(self, s):
        for l in s.strip("\n").split("\n"):
            self.lines.append("    " + l.strip() if not l.strip().endswith(":") else l.strip())
    def label(self, name):
        self.lines.append(f"{name}:")
    def raw(self, s):
        self.lines.append(s)
    def text(self):
        return "\n".join(self.lines) + "\n"

def vr(base, n=1):
    return f"v{base}" if n == 1 else f"v[{base}:{base+n-1}]"
def sr(base, n=1):
    return f"s{base}" if n == 1 else f"s[{base}:{base+n-1}]"

def kernel_header(a, name):
    a.raw(f".globl {name}")
    a.raw(".p2align 8")
    a.raw(f".type {name},@function")
    a.label(name)

def kernel_desc(name, nvgpr, nsgpr=96, accum=None):
    accum = accum if accum is not None else (nvgpr + 3) // 4 * 4
    return f""".p2align 6
.amdhsa_kernel {name}
  .amdhsa_next_free_vgpr {nvgpr}
  .amdhsa_next_free_sgpr {nsgpr}
  .amdhsa_accum_offset {accum}
  .amdhsa_group_segment_fixed_size 0
  .amdhsa_kernarg_size 72
  .amdhsa_user_sgpr_count 2
  .amdhsa_user_sgpr_kernarg_segment_ptr 1
  .amdhsa_system_sgpr_workgroup_id_x 1
.end_amdhsa_kernel
"""

def mfma32(d, a, b, c=None):
    cs = vr(d, 16) if c is None else (c if isinstance(c, str) else vr(c, 16))
    return f"v_mfma_f32_32x32x16_bf16 {vr(d,16)}, {vr(a,4)}, {vr(b,4)}, {cs}"
def smf32(d, a, b, idx):
    return f"v_smfmac_f32_32x32x32_bf16 {vr(d,16)}, {vr(a,4)}, {vr(b,8)}, v{idx}"
def smf16(d, a, b, idx):
    return f"v_smfmac_f32_16x16x64_bf16 {vr(d,4)}, {vr(a,4)}, {vr(b,8)}, v{idx}"
```

```python
import sys, struct, math
from asmlib import *

NAME = "concat_heads__softmax_full_mha__mha_block__prompt"
QF_OFF = 0
KV_OFF = 8 << 20
OF_OFF = 24 << 20
WS_USED = 32 << 20
def f32hex(x): return "0x%08x" % struct.unpack("<I", struct.pack("<f", x))[0]
QSCALE = math.log2(math.e) / math.sqrt(32.0)

K1_XRING = 0
K1_WRING = 98304
K1_LDS = 98304 + 5 * 12288
def k1(a):
    N = "k1_qkv_kernel"
    kernel_header(a, N)
    a(f"""
    s_cmp_ge_u32 s2, 256
    s_cbranch_scc1 k1_end
    s_load_dwordx4 s[4:7], s[0:1], 0
    s_load_dwordx4 s[8:11], s[0:1], 24
    s_load_dwordx2 s[12:13], s[0:1], 64
    v_lshrrev_b32 v1, 6, v0
    v_and_b32 v0, 63, v0
    v_readfirstlane_b32 s20, v1
    s_and_b32 s14, s2, 7
    s_lshr_b32 s15, s2, 3
    s_lshr_b32 s16, s14, 2
    s_and_b32 s17, s14, 1
    s_lshl_b32 s17, s17, 2
    s_and_b32 s19, s15, 3
    s_add_u32 s17, s17, s19
    s_lshr_b32 s18, s14, 1
    s_and_b32 s18, s18, 1
    s_lshl_b32 s18, s18, 3
    s_lshr_b32 s19, s15, 2
    s_add_u32 s18, s18, s19
    s_cmp_ge_u32 s20, 8
    s_cbranch_scc1 k1_loader
    """)
    XA = [4, 5, 6, 7]; WA = 8
    F = [16, 36]
    ACC = 56
    a(f"""
    s_lshr_b32 s21, s20, 1
    s_and_b32 s22, s20, 1
    v_and_b32 v1, 31, v0
    v_lshrrev_b32 v2, 5, v0
    v_lshrrev_b32 v3, 1, v1
    v_and_b32 v3, 7, v3
    v_xor_b32 v3, v3, v2
    v_lshlrev_b32 v3, 4, v3
    v_lshlrev_b32 v4, 7, v1
    v_add_u32 v4, v4, v3
    s_lshl_b32 s19, s21, 13
    v_add_u32 v4, s19, v4
    v_xor_b32 v5, 32, v4
    v_xor_b32 v6, 64, v4
    v_xor_b32 v7, 96, v4
    ; W address: r=(l&15)>>2, g=(l>>4)&1, c=l&3
    v_bfe_u32 v9, v0, 2, 2
    v_lshl_add_u32 v10, v2, 3, v9
    v_lshlrev_b32 v10, 7, v10
    v_bfe_u32 v11, v0, 4, 1
    v_lshlrev_b32 v11, 1, v11
    v_bfe_u32 v12, v0, 1, 1
    v_add_u32 v11, v11, v12
    s_lshl_b32 s19, s22, 2
    v_add_u32 v11, s19, v11
    v_bfe_u32 v12, v0, 3, 1
    v_lshlrev_b32 v12, 2, v12
    v_xor_b32 v11, v11, v12
    v_lshl_add_u32 v10, v11, 4, v10
    v_and_b32 v12, 1, v0
    v_lshl_add_u32 v10, v12, 3, v10
    v_add_u32 v{WA}, {K1_WRING}, v10
    """)
    for i in range(96):
        a(f"v_mov_b32 v{ACC+i}, 0")
    a("""
    s_mov_b32 s40, 0
    s_mov_b32 s41, 0
    s_mov_b32 s42, 16
    s_mov_b32 s47, 12288
    s_mov_b32 s48, 32768
    """)
    def reads(fs, ks, ks2):
        f = F[fs]
        r = []
        r.append(f"ds_read_b128 {vr(f,4)}, v{XA[ks]}")
        for s in range(3):
            for t in range(2):
                r.append(f"ds_read_b64_tr_b16 {vr(f+8+4*s+2*t,2)}, v{WA} offset:{s*4096+ks2*2048+t*512}")
        r.append(f"ds_read_b128 {vr(f+4,4)}, v{XA[ks]} offset:4096")
        return r
    def mfmas(fs):
        f = F[fs]
        m = []
        for tb in range(2):
            x = f + 4 * tb
            for s in range(3):
                w = f + 8 + 4 * s
                d = ACC + 16 * (3 * tb + s)
                m.append(mfma32(d, w, x) if s < 2 else mfma32(d, x, w))
        return m
    def wadv():
        return ["s_add_u32 s40, s40, 1", "s_cmp_eq_u32 s40, 5", f"s_cselect_b32 s43, {-4*12288 & 0xffffffff}, s47",
                "s_cselect_b32 s40, 0, s40", f"v_add_u32 v{WA}, s43, v{WA}"]
    def xadv():
        return ["s_add_u32 s41, s41, 1", "s_cmp_eq_u32 s41, 3", f"s_cselect_b32 s44, {-2*32768 & 0xffffffff}, s48",
                "s_cselect_b32 s41, 0, s41"] + [f"v_add_u32 v{x}, s44, v{x}" for x in XA]
    def kstep(fs, rd, post):
        m = mfmas(fs)
        a("s_waitcnt lgkmcnt(0)")
        fill = [rd[0:2], rd[2:4], rd[4:6], rd[6:8], post, []]
        for i in range(6):
            a(m[i])
            for x in fill[i]: a(x)
    a("s_barrier")
    for x in reads(0, 0, 0): a(x)
    a.raw(".p2align 6")
    a.label("k1_loop")
    kstep(0, reads(1, 1, 1), wadv())
    kstep(1, reads(0, 2, 0), [])
    a("s_barrier")
    kstep(0, reads(1, 3, 1), wadv() + xadv())
    kstep(1, reads(0, 0, 0), ["s_sub_u32 s42, s42, 1", "s_cmp_lg_u32 s42, 0"])
    a("s_barrier")
    a("s_cbranch_scc1 k1_loop")
    a(f"""
    s_waitcnt lgkmcnt(0)
    s_mov_b32 s32, s12
    s_mov_b32 s33, s13
    s_mov_b32 s34, {WS_USED}
    s_mov_b32 s35, 0x20000
    s_lshl_b32 s36, s18, 1
    s_add_u32 s36, s36, s22
    s_lshl_b32 s19, s16, 5
    s_add_u32 s36, s36, s19
    s_lshl_b32 s36, s36, 6
    s_lshl_b32 s19, s17, 3
    s_add_u32 s36, s36, s19
    s_lshl_b32 s19, s21, 1
    s_add_u32 s36, s36, s19         ; (hg*64+tb)
    s_lshl_b32 s37, s36, 11         ; Q off
    s_lshl_b32 s38, s36, 12
    s_add_u32 s38, s38, {KV_OFF}
    s_add_u32 s39, s38, 4096
    v_lshlrev_b32 v1, 4, v0
    v_bfe_u32 v2, v0, 2, 1
    v_bfe_u32 v3, v0, 3, 1
    v_and_b32 v4, 0x33, v0
    v_lshl_add_u32 v4, v2, 3, v4
    v_lshl_add_u32 v4, v3, 2, v4
    v_lshlrev_b32 v2, 4, v4
    s_nop 7
    """)
    for tb in range(2):
        for s in range(3):
            d = ACC + 16 * (3 * tb + s)
            if s == 0:
                for i in range(16): a(f"v_mul_f32 v{d+i}, {f32hex(QSCALE)}, v{d+i}")
            pk = 16 + 8 * ((3 * tb + s) % 4)
            for i in range(8): a(f"v_cvt_pk_bf16_f32 v{pk+i}, v{d+2*i}, v{d+2*i+1}")
            for f in range(2):
                if s == 0: a(f"buffer_store_dwordx4 {vr(pk+4*f,4)}, v1, s[32:35], s37 offen offset:{tb*2048+f*1024}")
                elif s == 1: a(f"buffer_store_dwordx4 {vr(pk+4*f,4)}, v2, s[32:35], s{38+tb} offen offset:{f*1024}")
                else: a(f"buffer_store_dwordx4 {vr(pk+4*f,4)}, v1, s[32:35], s{38+tb} offen offset:{2048+f*1024}")
    a("s_endpgm")
    a.label("k1_loader")
    a(f"""
    s_sub_u32 s21, s20, 8
    s_waitcnt lgkmcnt(0)
    s_cmp_eq_u32 s16, 0
    s_cselect_b32 s24, s4, s8
    s_cselect_b32 s25, s5, s9
    s_cselect_b32 s28, s6, s10
    s_cselect_b32 s29, s7, s11
    s_lshl_b32 s19, s17, 19
    s_add_u32 s24, s24, s19
    s_addc_u32 s25, s25, 0
    s_mov_b32 s26, 524288
    s_mov_b32 s27, 0x20000
    s_lshl_b32 s19, s18, 7
    s_add_u32 s28, s28, s19
    s_addc_u32 s29, s29, 0
    s_sub_u32 s30, {1024*6144}, s19
    s_mov_b32 s31, 0x20000
    v_lshrrev_b32 v1, 3, v0
    v_and_b32 v2, 7, v0            ; slot'
    v_lshrrev_b32 v3, 4, v0        ; lane>>4
    v_xor_b32 v4, v2, v3
    v_xor_b32 v5, 4, v4
    s_lshl_b32 s19, s21, 6
    v_add_u32 v6, s19, v1
    v_lshlrev_b32 v6, 11, v6
    v_lshl_add_u32 v8, v4, 4, v6
    v_lshl_add_u32 v9, v5, 4, v6
    v_add_u32 v9, 16384, v9
    v_add_u32 v10, 32768, v8
    v_add_u32 v11, 32768, v9
    v_add_u32 v12, 65536, v8
    v_add_u32 v13, 65536, v9
    v_add_u32 v14, 98304, v8
    v_add_u32 v15, 98304, v9
    ; W
    v_and_b32 v4, 1, v3
    v_lshlrev_b32 v4, 2, v4
    v_xor_b32 v4, v2, v4
    s_lshl_b32 s19, s21, 3
    v_add_u32 v6, s19, v1
    v_mul_u32_u24 v6, 6144, v6
    v_lshl_add_u32 v16, v4, 4, v6
    v_add_u32 v17, 2048, v16
    v_add_u32 v18, 4096, v16
    s_mov_b32 s40, 0               ; x soffset
    s_mov_b32 s41, 0               ; w soffset
    s_lshl_b32 s19, s21, 10
    s_add_u32 s42, s19, {K1_WRING}
    s_add_u32 s44, s42, {5*12288}
    s_lshl_b32 s43, s21, 13
    s_add_u32 s45, s43, {3*32768}
    """)
    def issueW():
        for s in range(3):
            a(f"s_add_u32 m0, s42, {s*4096}")
            a("s_nop 0")
            a(f"buffer_load_dwordx4 v{16+s}, s[28:31], s41 offen lds")
        a(f"""
        s_add_u32 s41, s41, {32*6144}
        s_add_u32 s42, s42, 12288
        s_sub_u32 s19, s42, {5*12288}
        s_cmp_ge_u32 s42, s44
        s_cselect_b32 s42, s19, s42
        """)
    def issueX():
        for i in range(8):
            a(f"s_add_u32 m0, s43, {i*1024}")
            a("s_nop 0")
            a(f"buffer_load_dwordx4 v{8+i}, s[24:27], s40 offen lds")
        a(f"""
        s_add_u32 s40, s40, 128
        s_add_u32 s43, s43, 32768
        s_sub_u32 s19, s43, {3*32768}
        s_cmp_ge_u32 s43, s45
        s_cselect_b32 s43, s19, s43
        """)
    issueW(); issueX(); issueW(); issueW(); issueX(); issueW()
    a("s_mov_b32 s46, 14")
    a.label("k1_lloop")
    a("s_waitcnt vmcnt(14)")
    a("s_barrier")
    issueW(); issueX()
    a("s_waitcnt vmcnt(14)")
    a("s_barrier")
    issueW()
    a("""
    s_sub_u32 s46, s46, 1
    s_cmp_lg_u32 s46, 0
    s_cbranch_scc1 k1_lloop
    s_waitcnt vmcnt(14)
    s_barrier
    s_waitcnt vmcnt(3)
    s_barrier
    s_waitcnt vmcnt(0)
    s_barrier
    """)
    a.label("k1_end")
    a("s_endpgm")
    return N, 152, 768, K1_LDS

K2_LDS = 131072
def k2(a):
    N = "k2_attn_kernel"
    kernel_header(a, N)
    VL16 = 1; VA = 2; VAN = 3; IDX = 4; T0 = 5; T1 = 6; T2 = 7
    ONES = 8
    KF = 12
    VF = 20
    QA = 28; QB = 36
    LA = 44; LB = 48
    MA = 52; MB = 53
    TM = 54
    OA = 64; OB = 80
    NMA = 96; NMB = 112
    SA = [128, 144]; SB = [160, 176]
    NV = 192
    a(f"""
    s_cmp_ge_u32 s2, 256
    s_cbranch_scc1 k2_end
    s_load_dwordx2 s[12:13], s[0:1], 64
    v_lshrrev_b32 v1, 6, v0
    v_and_b32 v0, 63, v0
    v_readfirstlane_b32 s20, v1
    s_and_b32 s14, s2, 7
    s_lshr_b32 s15, s2, 3
    s_lshl_b32 s16, s14, 3
    s_lshr_b32 s19, s15, 2
    s_add_u32 s16, s16, s19        ; hg
    s_and_b32 s17, s15, 3          ; quarter
    s_lshl_b32 s18, s17, 4
    s_lshl_b32 s19, s20, 1
    s_add_u32 s18, s18, s19
    v_lshlrev_b32 v{VL16}, 4, v0
    s_waitcnt lgkmcnt(0)
    s_lshl_b32 s19, s16, 18
    s_add_u32 s19, s19, {KV_OFF}
    s_add_u32 s24, s12, s19
    s_addc_u32 s25, s13, 0
    s_mov_b32 s26, 262144
    s_mov_b32 s27, 0x20000
    s_mov_b32 s28, s12
    s_mov_b32 s29, s13
    s_mov_b32 s30, {WS_USED}
    s_mov_b32 s31, 0x20000
    ; Q loads
    s_lshl_b32 s19, s16, 6
    s_add_u32 s19, s19, s18
    s_lshl_b32 s21, s19, 11
    buffer_load_dwordx4 {vr(QA,4)}, v{VL16}, s[28:31], s21 offen
    buffer_load_dwordx4 {vr(QA+4,4)}, v{VL16}, s[28:31], s21 offen offset:1024
    buffer_load_dwordx4 {vr(QB,4)}, v{VL16}, s[28:31], s21 offen offset:2048
    buffer_load_dwordx4 {vr(QB+4,4)}, v{VL16}, s[28:31], s21 offen offset:3072
    buffer_load_dwordx4 {vr(KF,4)}, v{VL16}, s[24:27], 0 offen
    buffer_load_dwordx4 {vr(KF+4,4)}, v{VL16}, s[24:27], 0 offen offset:1024
    s_lshl_b32 s40, s20, 12
    s_mov_b32 s41, s40
    """)
    def dma():
        r = [f"s_mov_b32 m0, s41", "s_nop 0"]
        for i in range(4):
            r.append(f"buffer_load_dwordx4 v{VL16}, s[24:27], s40 offen offset:{i*1024} lds")
        r += ["s_add_u32 s40, s40, 32768", "s_add_u32 s41, s41, 32768", "s_and_b32 s41, s41, 0x1ffff"]
        return r
    for c in range(3):
        for x in dma(): a(x)
    a(f"""
    v_mov_b32 v{IDX}, 0xdddd
    v_bfe_u32 v{T0}, v0, 2, 1
    v_cmp_eq_u32 vcc, 0, v{T0}
    v_mov_b32 v{T1}, 0x3f803f80
    s_nop 0
    v_cndmask_b32 v{ONES}, 0, v{T1}, vcc
    v_cndmask_b32 v{ONES+1}, 0, v{T1}, vcc
    v_cndmask_b32 v{ONES+2}, v{T1}, 0, vcc
    v_cndmask_b32 v{ONES+3}, v{T1}, 0, vcc
    v_mov_b32 v{VA}, v{VL16}
    v_add_u32 v{VAN}, 32768, v{VL16}
    """)
    for i in range(16):
        a(f"v_mov_b32 v{OA+i}, 0"); a(f"v_mov_b32 v{OB+i}, 0")
    for i in range(4):
        a(f"v_mov_b32 v{LA+i}, 0"); a(f"v_mov_b32 v{LB+i}, 0"); a(f"v_mov_b32 v{VF+4+i}, 0")
    for i in range(8):
        a(f"v_mov_b32 v{SB[1]+8+i}, 0")
    def rowmax(S, M, first):
        a(f"v_max3_f32 v{TM}, v{S}, v{S+1}, v{S+2}")
        a(f"v_max3_f32 v{TM+1}, v{S+3}, v{S+4}, v{S+5}")
        a(f"v_max3_f32 v{TM+2}, v{S+6}, v{S+7}, v{S+8}")
        a(f"v_max3_f32 v{TM+3}, v{S+9}, v{S+10}, v{S+11}")
        a(f"v_max3_f32 v{TM}, v{TM}, v{S+12}, v{S+13}")
        a(f"v_max3_f32 v{TM+1}, v{TM+1}, v{S+14}, v{S+15}")
        a(f"v_max3_f32 v{TM}, v{TM}, v{TM+2}, v{TM+3}")
        if first: a(f"v_max_f32 v{M}, v{TM}, v{TM+1}")
        else: a(f"v_max3_f32 v{M}, v{M}, v{TM}, v{TM+1}")
    def fill_nm(M, NM):
        a(f"v_mov_b32 v{TM}, v{M}")
        a("s_nop 1")
        a(f"v_permlane32_swap_b32 v{M}, v{TM}")
        a("s_nop 1")
        a(f"v_max_f32 v{M}, v{M}, v{TM}")
        for i in range(16): a(f"v_sub_f32 v{NM+i}, 0, v{M}")
    a("s_waitcnt vmcnt(12)")
    a(mfma32(SA[0], KF, QA, "0")); a(mfma32(SA[0], KF+4, QA+4))
    a(mfma32(SB[0], KF, QB, "0")); a(mfma32(SB[0], KF+4, QB+4))
    a("s_nop 10")
    rowmax(SA[0], MA, True)
    a("s_nop 3")
    rowmax(SB[0], MB, True)
    fill_nm(MA, NMA); fill_nm(MB, NMB)
    a("s_nop 1")
    a(mfma32(SA[0], KF, QA, NMA)); a(mfma32(SA[0], KF+4, QA+4))
    a(mfma32(SB[0], KF, QB, NMB)); a(mfma32(SB[0], KF+4, QB+4))
    a("s_waitcnt vmcnt(8)")
    a("s_barrier")
    a(f"ds_read_b128 {vr(KF,4)}, v{VA} offset:4096")
    a(f"ds_read_b128 {vr(KF+4,4)}, v{VA} offset:{4096+1024}")
    a(f"ds_read_b128 {vr(VF,4)}, v{VA} offset:2048")
    a("s_mov_b32 s42, 8")
    a.raw(".p2align 6")
    a.label("k2_loop")
    a("s_waitcnt vmcnt(4)")
    a("s_barrier")
    def rd(dst, blk, off):
        if blk < 8: return f"ds_read_b128 {vr(dst,4)}, v{VA} offset:{blk*4096+off}"
        return f"ds_read_b128 {vr(dst,4)}, v{VAN} offset:{(blk-8)*4096+off}"
    for t in range(8):
        c = t & 1; n = c ^ 1
        ea = [f"v_exp_f32 v{SA[c]+i}, v{SA[c]+i}" for i in range(16)]
        eb = [f"v_exp_f32 v{SB[c]+i}, v{SB[c]+i}" for i in range(16)]
        e = ea + eb
        M = [
            (smf32(OB, VF+4, SB[n]+8, IDX), 3, [], [rd(VF+4, t, 3072)]),
            (smf16(LB, ONES, SB[n]+8, IDX), 2, [], []),
            (mfma32(SA[n], KF, QA, NMA), 3, ["s_waitcnt lgkmcnt(1)"], []),
            (mfma32(SA[n], KF+4, QA+4), 3, [], []),
            (smf32(OA, VF, SA[c], IDX), 3, [], []),
            (smf16(LA, ONES, SA[c], IDX), 2, [], []),
            (mfma32(SB[n], KF, QB, NMB), 3, [], []),
            (mfma32(SB[n], KF+4, QB+4), 3, [], [rd(KF, t+2, 0), rd(KF+4, t+2, 1024)]),
            (smf32(OA, VF+4, SA[c]+8, IDX), 3, ["s_waitcnt lgkmcnt(2)"], []),
            (smf16(LA, ONES, SA[c]+8, IDX), 2, [], []),
            (smf32(OB, VF, SB[c], IDX), 3, [], [rd(VF, t+1, 2048)]),
            (smf16(LB, ONES, SB[c], IDX), 2, [], []),
        ]
        k = 0
        for mi, (ins, ne, pre, post) in enumerate(M):
            for x in pre: a(x)
            if mi == 0: a("s_nop 0")
            if mi == 0: a("s_nop 0")
            a(ins)
            for x in post: a(x)
            for _ in range(ne):
                a(e[k]); k += 1
            if t == 1 and mi == 3:
                for x in dma(): a(x)
        assert k == 32
    a(f"""
    v_mov_b32 v{VA}, v{VAN}
    v_add_u32 v{VAN}, 32768, v{VAN}
    v_and_b32 v{VAN}, 0x1ffff, v{VAN}
    s_sub_u32 s42, s42, 1
    s_cmp_lg_u32 s42, 0
    s_cbranch_scc1 k2_loop
    """)
    a(smf32(OB, VF+4, SB[1]+8, IDX))
    a(smf16(LB, ONES, SB[1]+8, IDX))
    a("s_mov_b32 s43, 0")
    a.label("k2_fin")
    a("s_nop 15")
    for (O, L, tm) in ((OA, LA, TM), (OB, LB, TM+4)):
        a(f"v_max3_f32 v{tm}, |v{O}|, |v{O+1}|, |v{O+2}|")
        a(f"v_max3_f32 v{tm+1}, |v{O+3}|, |v{O+4}|, |v{O+5}|")
        a(f"v_max3_f32 v{tm+2}, |v{O+6}|, |v{O+7}|, |v{O+8}|")
        a(f"v_max3_f32 v{tm+3}, |v{O+9}|, |v{O+10}|, |v{O+11}|")
        a(f"v_max3_f32 v{tm}, v{tm}, |v{O+12}|, |v{O+13}|")
        a(f"v_max3_f32 v{tm+1}, v{tm+1}, |v{O+14}|, |v{O+15}|")
        a(f"v_max3_f32 v{tm}, v{tm}, v{tm+2}, v{tm+3}")
        a(f"v_max_f32 v{tm}, v{tm}, v{tm+1}")
    a(f"v_add_f32 v{TM+1}, v{OA}, v{OB}")
    for i in range(1, 16):
        a(f"v_add_f32 v{TM+1}, v{TM+1}, v{OA+i}")
        a(f"v_add_f32 v{TM+1}, v{TM+1}, v{OB+i}")
    a(f"""
    v_max_f32 v{TM}, v{TM}, v{TM+4}
    v_mov_b32 v{TM+2}, {f32hex(2.0**100)}
    v_cmp_nle_f32 vcc, v{LA}, v{TM+2}
    v_cmp_nle_f32 s[44:45], v{LB}, v{TM+2}
    v_mov_b32 v{TM+3}, {f32hex(2.0**120)}
    v_cmp_nle_f32 s[46:47], v{TM}, v{TM+3}
    v_cmp_u_f32 s[48:49], v{TM+1}, v{TM+1}
    s_nop 3
    s_or_b64 s[44:45], s[44:45], vcc
    s_or_b64 s[46:47], s[46:47], s[48:49]
    s_or_b64 s[44:45], s[44:45], s[46:47]
    s_cmp_eq_u64 s[44:45], 0
    s_cbranch_scc1 k2_store
    s_cmp_eq_u32 s43, 0
    s_cbranch_scc1 k2_slow
    """)
    a.label("k2_store")
    a(f"""
    v_rcp_f32 v{TM}, v{LA}
    v_rcp_f32 v{TM+1}, v{LB}
    s_lshr_b32 s19, s16, 5
    s_lshl_b32 s19, s19, 6
    s_add_u32 s19, s19, s18
    s_lshl_b32 s19, s19, 5
    s_and_b32 s21, s16, 31
    s_add_u32 s19, s19, s21
    s_lshl_b32 s19, s19, 11
    s_add_u32 s21, s19, {OF_OFF}
    s_add_u32 s22, s21, 65536
    """)
    for (O, tm, so, pk) in ((OA, TM, 21, SA[0]), (OB, TM+1, 22, SA[0]+8)):
        for i in range(16): a(f"v_mul_f32 v{O+i}, v{O+i}, v{tm}")
        for i in range(8): a(f"v_cvt_pk_bf16_f32 v{pk+i}, v{O+2*i}, v{O+2*i+1}")
        a(f"buffer_store_dwordx4 {vr(pk,4)}, v{VL16}, s[28:31], s{so} offen")
        a(f"buffer_store_dwordx4 {vr(pk+4,4)}, v{VL16}, s[28:31], s{so} offen offset:1024")
    a.label("k2_end")
    a("s_endpgm")
    a.label("k2_slow")
    a("s_mov_b32 s43, 1")
    a("s_waitcnt vmcnt(0) lgkmcnt(0)")
    a(f"v_mov_b32 v{MA}, 0xff800000")
    a(f"v_mov_b32 v{MB}, 0xff800000")
    a("s_mov_b32 s42, 0")
    a.label("k2_slow_max")
    a(f"buffer_load_dwordx4 {vr(KF,4)}, v{VL16}, s[24:27], s42 offen")
    a(f"buffer_load_dwordx4 {vr(KF+4,4)}, v{VL16}, s[24:27], s42 offen offset:1024")
    a("s_waitcnt vmcnt(0)")
    a(mfma32(SA[0], KF, QA, "0")); a(mfma32(SA[0], KF+4, QA+4))
    a(mfma32(SB[0], KF, QB, "0")); a(mfma32(SB[0], KF+4, QB+4))
    a("s_nop 15")
    rowmax(SA[0], MA, False)
    rowmax(SB[0], MB, False)
    a("""
    s_add_u32 s42, s42, 4096
    s_cmp_lt_u32 s42, 262144
    s_cbranch_scc1 k2_slow_max
    """)
    fill_nm(MA, NMA); fill_nm(MB, NMB)
    for i in range(16):
        a(f"v_mov_b32 v{OA+i}, 0"); a(f"v_mov_b32 v{OB+i}, 0")
    for i in range(4):
        a(f"v_mov_b32 v{LA+i}, 0"); a(f"v_mov_b32 v{LB+i}, 0")
    a("s_mov_b32 s42, 0")
    a.label("k2_slow_main")
    a(f"buffer_load_dwordx4 {vr(KF,4)}, v{VL16}, s[24:27], s42 offen")
    a(f"buffer_load_dwordx4 {vr(KF+4,4)}, v{VL16}, s[24:27], s42 offen offset:1024")
    a(f"buffer_load_dwordx4 {vr(VF,4)}, v{VL16}, s[24:27], s42 offen offset:2048")
    a(f"buffer_load_dwordx4 {vr(VF+4,4)}, v{VL16}, s[24:27], s42 offen offset:3072")
    a("s_waitcnt vmcnt(0)")
    a(mfma32(SA[0], KF, QA, NMA)); a(mfma32(SA[0], KF+4, QA+4))
    a(mfma32(SB[0], KF, QB, NMB)); a(mfma32(SB[0], KF+4, QB+4))
    a("s_nop 15")
    for i in range(16): a(f"v_exp_f32 v{SA[0]+i}, v{SA[0]+i}")
    for i in range(16): a(f"v_exp_f32 v{SB[0]+i}, v{SB[0]+i}")
    a("s_nop 1")
    a(smf32(OA, VF, SA[0], IDX)); a(smf32(OA, VF+4, SA[0]+8, IDX))
    a(smf16(LA, ONES, SA[0], IDX)); a(smf16(LA, ONES, SA[0]+8, IDX))
    a(smf32(OB, VF, SB[0], IDX)); a(smf32(OB, VF+4, SB[0]+8, IDX))
    a(smf16(LB, ONES, SB[0], IDX)); a(smf16(LB, ONES, SB[0]+8, IDX))
    a("""
    s_nop 7
    s_add_u32 s42, s42, 4096
    s_cmp_lt_u32 s42, 262144
    s_cbranch_scc1 k2_slow_main
    s_branch k2_fin
    """)
    return N, NV, 512, K2_LDS

K3_NST = 4
K3_LDS = K3_NST * 32768
def k3(a):
    N = "k3_out_kernel"
    kernel_header(a, N)
    a(f"""
    s_cmp_ge_u32 s2, 256
    s_cbranch_scc1 k3_end
    s_load_dwordx2 s[4:5], s[0:1], 16
    s_load_dwordx2 s[6:7], s[0:1], 40
    s_load_dwordx2 s[8:9], s[0:1], 48
    s_load_dwordx2 s[12:13], s[0:1], 64
    v_lshrrev_b32 v1, 6, v0
    v_and_b32 v0, 63, v0
    v_readfirstlane_b32 s20, v1
    s_and_b32 s14, s2, 7
    s_lshr_b32 s15, s2, 3
    s_lshr_b32 s16, s14, 2         ; p
    s_and_b32 s17, s14, 1
    s_lshl_b32 s17, s17, 3
    s_and_b32 s19, s15, 7
    s_add_u32 s17, s17, s19
    s_lshr_b32 s18, s14, 1
    s_and_b32 s18, s18, 1
    s_lshl_b32 s18, s18, 2
    s_lshr_b32 s19, s15, 3
    s_add_u32 s18, s18, s19
    s_cmp_ge_u32 s20, 4
    s_cbranch_scc1 k3_loader
    """)
    OAD = 4; WAD = [5, 6]
    F = [16, 32]
    ACC = 48
    a(f"""
    s_lshr_b32 s21, s20, 1         ; wr
    s_and_b32 s22, s20, 1          ; wc
    v_lshlrev_b32 v{OAD}, 4, v0
    s_lshl_b32 s19, s21, 13
    v_add_u32 v{OAD}, s19, v{OAD}
    v_lshrrev_b32 v2, 5, v0
    v_bfe_u32 v9, v0, 2, 2
    v_lshl_add_u32 v10, v2, 2, v9
    v_lshlrev_b32 v10, 7, v10
    v_and_b32 v11, 1, v0
    v_lshl_add_u32 v10, v11, 6, v10
    v_bfe_u32 v11, v0, 4, 1
    v_lshl_add_u32 v10, v11, 4, v10
    v_bfe_u32 v11, v0, 1, 1
    v_lshl_add_u32 v10, v11, 3, v10
    v_bfe_u32 v11, v0, 3, 1
    v_lshl_add_u32 v10, v11, 5, v10
    s_lshl_b32 s19, s22, 13
    s_add_u32 s19, s19, 16384
    v_add_u32 v{WAD[0]}, s19, v10
    v_xor_b32 v{WAD[1]}, 32, v{WAD[0]}
    """)
    for i in range(64): a(f"v_mov_b32 v{ACC+i}, 0")
    a("s_mov_b32 s42, 16")
    def reads(fs, ks):
        f = F[fs]
        r = [f"ds_read_b128 {vr(f,4)}, v{OAD} offset:{ks*1024}"]
        for t in range(2):
            for tp in range(2):
                r.append(f"ds_read_b64_tr_b16 {vr(f+8+4*t+2*tp,2)}, v{WAD[t]} offset:{ks*2048+tp*1024}")
        r.append(f"ds_read_b128 {vr(f+4,4)}, v{OAD} offset:{4096+ks*1024}")
        return r
    def adv():
        r = []
        for x in [OAD] + WAD:
            r.append(f"v_add_u32 v{x}, 32768, v{x}")
            r.append(f"v_and_b32 v{x}, {K3_LDS-1}, v{x}")
        return r
    def kstep(fs, rd, post):
        f = F[fs]
        m = [mfma32(ACC + 16 * (2 * tb + t), f + 8 + 4 * t, f + 4 * tb) for tb in range(2) for t in range(2)]
        a("s_waitcnt lgkmcnt(0)")
        fill = [rd[0:3], rd[3:6], post, []]
        for i in range(4):
            a(m[i])
            for x in fill[i]: a(x)
    a("s_barrier")
    for x in reads(0, 0): a(x)
    a.raw(".p2align 6")
    a.label("k3_loop")
    kstep(0, reads(1, 1), [])
    kstep(1, reads(0, 2), [])
    kstep(0, reads(1, 3), adv())
    kstep(1, reads(0, 0), ["s_sub_u32 s42, s42, 1", "s_cmp_lg_u32 s42, 0"])
    a("s_barrier")
    a("s_cbranch_scc1 k3_loop")
    a(f"""
    s_waitcnt lgkmcnt(0)
    s_mov_b32 s32, s8
    s_mov_b32 s33, s9
    s_mov_b32 s34, {2048*2048*2}
    s_mov_b32 s35, 0x20000
    s_lshl_b32 s36, s17, 7
    s_lshl_b32 s19, s21, 6
    s_add_u32 s36, s36, s19
    s_lshl_b32 s36, s36, 12
    s_lshl_b32 s19, s16, 11
    s_add_u32 s36, s36, s19
    s_lshl_b32 s19, s18, 8
    s_add_u32 s36, s36, s19
    s_lshl_b32 s19, s22, 7
    s_add_u32 s36, s36, s19
    s_add_u32 s37, s36, {32*4096}
    v_and_b32 v1, 31, v0
    v_lshlrev_b32 v1, 12, v1
    v_lshrrev_b32 v2, 5, v0
    v_lshl_add_u32 v1, v2, 6, v1
    s_nop 7
    """)
    for tb in range(2):
        for t in range(2):
            d = ACC + 16 * (2 * tb + t)
            pk = 16 + 8 * (2 * tb + t)
            for i in range(8): a(f"v_cvt_pk_bf16_f32 v{pk+i}, v{d+2*i}, v{d+2*i+1}")
            for f in range(2):
                a(f"buffer_store_dwordx4 {vr(pk+4*f,4)}, v1, s[32:35], s{36+tb} offen offset:{32*t+16*f}")
    a("s_endpgm")
    a.label("k3_loader")
    a(f"""
    s_sub_u32 s21, s20, 4
    s_waitcnt lgkmcnt(0)
    s_cmp_eq_u32 s16, 0
    s_cselect_b32 s28, s4, s6
    s_cselect_b32 s29, s5, s7
    s_lshl_b32 s19, s18, 8
    s_add_u32 s28, s28, s19
    s_addc_u32 s29, s29, 0
    s_sub_u32 s30, {1024*2048}, s19
    s_mov_b32 s31, 0x20000
    s_lshl_b32 s19, s16, 6
    s_lshl_b32 s22, s17, 2
    s_add_u32 s19, s19, s22
    s_add_u32 s19, s19, s21
    s_lshl_b32 s19, s19, 16
    s_add_u32 s19, s19, {OF_OFF}
    s_add_u32 s24, s12, s19
    s_addc_u32 s25, s13, 0
    s_mov_b32 s26, 65536
    s_mov_b32 s27, 0x20000
    v_lshlrev_b32 v8, 4, v0
    v_lshrrev_b32 v1, 3, v0
    v_and_b32 v2, 7, v0
    v_bfe_u32 v3, v0, 4, 1
    v_lshlrev_b32 v3, 1, v3
    v_xor_b32 v2, v2, v3
    s_lshl_b32 s19, s21, 4
    v_add_u32 v1, s19, v1
    v_lshlrev_b32 v1, 11, v1
    v_lshl_add_u32 v10, v2, 4, v1
    v_add_u32 v11, 16384, v10
    v_add_u32 v12, 128, v10
    v_add_u32 v13, 128, v11
    s_mov_b32 s40, 0
    s_mov_b32 s41, 0
    s_lshl_b32 s43, s21, 12        ; O dest
    s_lshl_b32 s44, s21, 11
    s_add_u32 s44, s44, 16384      ; W dest
    """)
    def issue():
        a("s_mov_b32 m0, s43")
        a("s_nop 0")
        for i in range(4):
            a(f"buffer_load_dwordx4 v8, s[24:27], s40 offen offset:{i*1024} lds")
        for i in range(4):
            a(f"s_add_u32 m0, s44, {(i>>1)*8192+(i&1)*1024}")
            a("s_nop 0")
            a(f"buffer_load_dwordx4 v{10+i}, s[28:31], s41 offen lds")
        a(f"""
        s_add_u32 s40, s40, 4096
        s_add_u32 s41, s41, {64*2048}
        s_add_u32 s43, s43, 32768
        s_and_b32 s43, s43, {K3_LDS-1}
        s_add_u32 s44, s44, 32768
        s_and_b32 s44, s44, {K3_LDS-1}
        """)
    issue(); issue(); issue()
    a("s_mov_b32 s46, 13")
    a.label("k3_lloop")
    a("s_waitcnt vmcnt(8)")
    a("s_barrier")
    issue()
    a("""
    s_sub_u32 s46, s46, 1
    s_cmp_lg_u32 s46, 0
    s_cbranch_scc1 k3_lloop
    s_waitcnt vmcnt(8)
    s_barrier
    s_waitcnt vmcnt(0)
    s_barrier
    """)
    a.label("k3_end")
    a("s_endpgm")
    return N, 112, 512, K3_LDS

def build(path):
    a = Asm()
    ks = [k1(a), k2(a), k3(a)]
    ref = open(f"cdna_kernels/{NAME}.s.ref").read().split("\n")
    hdr = [l for l in ref if l.startswith(";") and "@launch" not in l and "Override launch" not in l and "grid=ceil" not in l]
    out = hdr + [f"; @launch kernel={n} grid=(256,1,1) block=({blk},1,1) lds={lds}" for (n, nv, blk, lds) in ks]
    out += ['.amdgcn_target "amdgcn-amd-amdhsa--gfx950"', ".text"]
    txt = "\n".join(out) + "\n" + a.text() + '.section .rodata,"a"\n'
    for (n, nv, blk, lds) in ks: txt += kernel_desc(n, nv)
    open(path, "w").write(txt)

if __name__ == "__main__":
    build(sys.argv[1] if len(sys.argv) > 1 else f"cdna_kernels/{NAME}.s")
```
